```python
import torch

def _softmax(x, axis=-1):
    return torch.softmax(x, dim=axis)
def _gelu(x):
    return torch.nn.functional.gelu(x, approximate="tanh")
def _silu(x):
    return torch.nn.functional.silu(x)
def _sigmoid(x):
    return torch.sigmoid(x)
def _layernorm(x, axis=-1, eps=1e-5):
    m = x.mean(dim=axis, keepdim=True)
    v = x.var(dim=axis, keepdim=True, unbiased=False)
    return (x - m) / torch.sqrt(v + eps)
def _scatter_add(tgt, idx, src, axis=0):
    return tgt.clone().index_add_(axis, idx, src)
def _segment_sum(src, seg, n):
    out = torch.zeros((n,) + src.shape[1:], dtype=src.dtype)
    return out.index_add_(0, seg, src)
def _pad(x, pw):
    flat = tuple(v for pair in reversed(pw) for v in pair)
    return torch.nn.functional.pad(x, flat)

kernel_name = 'recurrent_scan__ssm_conv_s5__dense_activation_relu__prompt'

def setup_inputs():

    _w = (lambda a: (lambda t: t.to(torch.bfloat16) if t.is_floating_point() else t)(torch.as_tensor(a)))
    def _A_setup():
        B, S, D = 1, 2048, 640
        P = D
        Lambda_re = -0.5 * (lambda _x: torch.exp(torch.as_tensor(_x)))((lambda *s: torch.randn(*s, dtype=torch.bfloat16) * 0.2)(P))
        Lambda_im = (lambda *s: torch.randn(*s, dtype=torch.bfloat16) * 0.4)(P) * 1.0
        B_re = (lambda *s: torch.randn(*s, dtype=torch.bfloat16) * 0.2)(P, D) * (D ** -0.5)
        B_im = (lambda *s: torch.randn(*s, dtype=torch.bfloat16) * 0.2)(P, D) * (D ** -0.5)
        C_re = (lambda *s: torch.randn(*s, dtype=torch.bfloat16) * 0.2)(D, P) * (P ** -0.5)
        C_im = (lambda *s: torch.randn(*s, dtype=torch.bfloat16) * 0.2)(D, P) * (P ** -0.5)
        log_dt = (lambda *s: torch.randn(*s, dtype=torch.bfloat16) * 0.2)(P) * 0.3 - 2.0
        Dskip = (lambda *s: torch.randn(*s, dtype=torch.bfloat16) * 0.05)(D)
        return {
            "x": _w((lambda *s: torch.randn(*s, dtype=torch.bfloat16) * 0.05)(B, S, D)),
            "Lambda_re": _w(Lambda_re),
            "Lambda_im": _w(Lambda_im),
            "B_re": _w(B_re),
            "B_im": _w(B_im),
            "C_re": _w(C_re),
            "C_im": _w(C_im),
            "log_dt": _w(log_dt),
            "Dskip": _w(Dskip),
        }
    _A_in = _A_setup()

    def _B_setup():
        B, S, D, Dff = 1, 2048, 640, 1728
        return {
            "x": _w((lambda *s: torch.randn(*s, dtype=torch.bfloat16) * 0.05)(B, S, D)),
            "w1": _w((lambda *s: torch.randn(*s, dtype=torch.bfloat16) * 0.05)(D, Dff)),
            "w2": _w((lambda *s: torch.randn(*s, dtype=torch.bfloat16) * 0.05)(Dff, D)),
        }
    _B_in = _B_setup()

    return {
        "A_x": _A_in["x"],
        "A_Lambda_re": _A_in["Lambda_re"],
        "A_Lambda_im": _A_in["Lambda_im"],
        "A_B_re": _A_in["B_re"],
        "A_B_im": _A_in["B_im"],
        "A_C_re": _A_in["C_re"],
        "A_C_im": _A_in["C_im"],
        "A_log_dt": _A_in["log_dt"],
        "A_Dskip": _A_in["Dskip"],
        "B_x": _B_in["x"],
        "B_w1": _B_in["w1"],
        "B_w2": _B_in["w2"],
    }

def reference(A_x, A_Lambda_re, A_Lambda_im, A_B_re, A_B_im, A_C_re, A_C_im, A_log_dt, A_Dskip, B_x, B_w1, B_w2):
    def _A_ref(x, Lambda_re, Lambda_im, B_re, B_im, C_re, C_im, log_dt, Dskip):
        Bsz, L, H = x.shape
        Lam = Lambda_re + 1j * Lambda_im
        Bmat = B_re + 1j * B_im
        Cmat = C_re + 1j * C_im
        dt = torch.exp(log_dt)
        Lam_bar = torch.exp(dt * Lam)
        B_bar = ((Lam_bar - 1.0) / Lam)[:, None] * Bmat
        Bu = torch.einsum("bld,pd->blp", x + 0j, B_bar)
        h = torch.zeros_like(Bu[:, 0, :])
        hs = []
        for t in range(L):
            h = Lam_bar[None, :] * h + Bu[:, t, :]
            hs.append(h)
        hseq = torch.stack(hs, 1)
        y = 2.0 * torch.einsum("blp,dp->bld", hseq, Cmat).real + x * Dskip[None, None, :]
        return y

    def _B_ref(x, w1, w2):
        h = torch.einsum("bsd,df->bsf", x, w1)
        zero = torch.zeros_like(h)
        h = torch.maximum(h, zero)
        return torch.einsum("bsf,fd->bsd", h, w2)

    x = A_x
    xn = _layernorm(x, axis=-1)
    s = _A_ref(xn, A_Lambda_re, A_Lambda_im, A_B_re, A_B_im, A_C_re, A_C_im, A_log_dt, A_Dskip)
    g = _silu(_B_ref(xn, B_w1, B_w2))
    return x + s * g
```

```python
from gen import *

NK1 = 10
S1 = 4
SLOT1 = 40960
K1_LDS = S1 * SLOT1
K1_VGPR = 248
NBU_CB = 7

ACC0 = 64
def acc(j, c): return ACC0 + (j * 6 + c) * 4
FR0 = 160
def fa(b, j): return FR0 + b * 40 + j * 4
def fb(b, c): return FR0 + b * 40 + 16 + c * 4

def vr(a, n): return f"v[{a}:{a+n-1}]"

S_TB, S_CB, S_W = 40, 41, 42
S_SLOT, S_KA, S_KB, S_STRB = 43, 44, 45, 46
S_LA, S_LB, S_T0, S_T1 = 47, 48, 49, 50
S_CNT = 51
S_WT, S_WC = 52, 53

def issue_stage(e):
    e(f"s_add_u32 s{S_T0}, s{S_SLOT}, s{S_LA}")
    for i in range(4):
        e(f"s_add_u32 m0, s{S_T0}, {i*1024}")
        e("s_nop 0")
        e(f"buffer_load_dwordx4 v{4+i}, s[8:11], s{S_KA} offen lds")
    e(f"s_add_u32 s{S_T0}, s{S_SLOT}, s{S_LB}")
    for i in range(6):
        e(f"s_add_u32 m0, s{S_T0}, {i*1024}")
        e("s_nop 0")
        e(f"buffer_load_dwordx4 v{10+i}, s[12:15], s{S_KB} offen lds")
    e(f"s_add_u32 s{S_KA}, s{S_KA}, 128")
    e(f"s_add_u32 s{S_KB}, s{S_KB}, s{S_STRB}")
    e(f"s_add_u32 s{S_SLOT}, s{S_SLOT}, {SLOT1}")
    e(f"s_cmp_eq_u32 s{S_SLOT}, {S1*SLOT1}")
    e(f"s_cselect_b32 s{S_SLOT}, 0, s{S_SLOT}")

def gen_loader(e):
    e.label("k1_loader")
    e(f"s_sub_u32 s{S_W}, s{S_W}, 4")
    e("v_and_b32 v1, 63, v0")
    e("v_lshrrev_b32 v2, 3, v1")
    e("v_and_b32 v3, 7, v1")
    e(f"s_lshl_b32 s{S_T0}, s{S_W}, 5")
    e(f"s_lshl_b32 s{S_T1}, s{S_TB}, 7")
    for i in range(4):
        e(f"v_add_u32 v20, s{S_T0}, v2")
        e(f"v_add_u32 v20, {8*i}, v20")
        e("v_and_b32 v21, 64, v20")
        e("v_bfe_u32 v22, v20, 2, 2")
        e("v_lshl_add_u32 v21, v22, 4, v21")
        e("v_and_b32 v22, 1, v20")
        e("v_lshl_add_u32 v21, v22, 3, v21")
        e("v_bfe_u32 v22, v20, 4, 2")
        e("v_lshl_add_u32 v21, v22, 1, v21")
        e("v_bfe_u32 v22, v20, 1, 1")
        e("v_add_u32 v21, v21, v22")
        e(f"v_add_u32 v21, s{S_T1}, v21")
        e("v_mul_u32_u24 v21, 1280, v21")
        e("v_bfe_u32 v22, v20, 1, 3")
        e("v_xor_b32 v22, v22, v3")
        e(f"v_lshl_add_u32 v{4+i}, v22, 4, v21")
    e(f"s_lshl_b32 s{S_LA}, s{S_W}, 12")
    e(f"s_mul_i32 s{S_LB}, s{S_W}, 6144")
    e(f"s_add_u32 s{S_LB}, s{S_LB}, 16384")
    e("s_waitcnt lgkmcnt(0)")
    srd(e, 8, 4, 5, XN_SZ, WS_XN)
    e(f"s_cmp_ge_u32 s{S_CB}, {NBU_CB}")
    e("s_cbranch_scc1 k1_loader_ffn")
    e(f"s_mul_i32 s{S_T0}, s{S_CB}, 96")
    e(f"s_lshr_b32 s{S_T1}, s{S_W}, 1")
    e(f"s_mul_i32 s{S_T1}, s{S_T1}, 48")
    e(f"s_add_u32 s{S_T0}, s{S_T0}, s{S_T1}")
    e("v_lshrrev_b32 v22, 4, v1")
    for i in range(6):
        e(f"v_add_u32 v20, s{S_T0}, v2")
        e(f"v_add_u32 v20, {8*i}, v20")
        e("v_mul_u32_u24 v20, 1280, v20")
        e(f"v_add_u32 v21, {4*i}, v22")
        e("v_and_b32 v21, 7, v21")
        e("v_xor_b32 v21, v21, v3")
        e(f"v_lshl_add_u32 v{10+i}, v21, 4, v20")
    e(f"s_and_b32 s{S_T0}, s{S_W}, 1")
    e(f"s_cmp_eq_u32 s{S_T0}, 0")
    e("s_cselect_b32 s12, s6, s30")
    e("s_cselect_b32 s13, s7, s31")
    e(f"s_mov_b32 s14, {P*D*2}")
    e("s_mov_b32 s15, 0x00020000")
    e(f"s_mov_b32 s{S_STRB}, 128")
    e("s_branch k1_loader_go")
    e.label("k1_loader_ffn")
    e(f"s_sub_u32 s{S_T1}, s{S_CB}, {NBU_CB}")
    e(f"s_mul_i32 s{S_T1}, s{S_T1}, 384")
    e(f"s_lshl_b32 s{S_T0}, s{S_W}, 4")
    for i in range(6):
        e(f"v_add_u32 v20, {64*i}, v1")
        e("v_mul_u32_u24 v21, 2731, v20")
        e("v_lshrrev_b32 v21, 16, v21")
        e("v_mul_u32_u24 v22, 24, v21")
        e("v_sub_u32 v20, v20, v22")
        e(f"v_add_u32 v21, s{S_T0}, v21")
        e("v_bfe_u32 v22, v21, 1, 1")
        e("v_bfe_u32 v23, v21, 3, 1")
        e("v_lshl_add_u32 v22, v23, 1, v22")
        e("v_lshlrev_b32 v22, 1, v22")
        e("v_xor_b32 v20, v20, v22")
        e("v_mul_u32_u24 v21, 3456, v21")
        e("v_lshl_add_u32 v21, v20, 4, v21")
        e(f"v_add_u32 v{10+i}, s{S_T1}, v21")
    srd(e, 12, 32, 33, D * F * 2)
    e(f"s_mov_b32 s{S_STRB}, {64*3456}")
    e.label("k1_loader_go")
    e(f"s_mov_b32 s{S_SLOT}, 0")
    e(f"s_mov_b32 s{S_KA}, 0")
    e(f"s_mov_b32 s{S_KB}, 0")
    e(f"s_mov_b32 s{S_CNT}, 0")
    e.label("k1_ld_pro")
    issue_stage(e)
    e(f"s_add_u32 s{S_CNT}, s{S_CNT}, 1")
    e(f"s_cmp_lt_u32 s{S_CNT}, {S1}")
    e("s_cbranch_scc1 k1_ld_pro")
    e(f"s_waitcnt vmcnt({10*(S1-1)})")
    e("s_barrier")
    e(f"s_mov_b32 s{S_CNT}, 1")
    e.label("k1_ld_loop")
    e(f"s_waitcnt vmcnt({10*(S1-2)})")
    e("s_barrier")
    issue_stage(e)
    e(f"s_add_u32 s{S_CNT}, s{S_CNT}, 1")
    e(f"s_cmp_le_u32 s{S_CNT}, {NK1-S1}")
    e("s_cbranch_scc1 k1_ld_loop")
    for k in range(NK1 - S1 + 1, NK1):
        e(f"s_waitcnt vmcnt({10*(NK1-1-k)})")
        e("s_barrier")
    e("s_barrier")
    e(f"s_cmp_ge_u32 s{S_CB}, {NBU_CB}")
    e("s_cbranch_scc1 k1_done")
    e(f"s_cmp_ge_u32 s{S_W}, 2")
    e("s_cbranch_scc1 k1_done")
    gen_chain(e)

AGR, AGI, TR, TI = 0, 6144, 12288, 18432

def gen_chain(e):
    e(f"s_lshl_b32 s{S_T0}, s{S_W}, 6")
    e(f"v_add_u32 v2, s{S_T0}, v1")
    e(f"s_mul_i32 s{S_T0}, s{S_CB}, 96")
    e(f"v_add_u32 v3, s{S_T0}, v2")
    srd(e, 16, 4, 5, PAR_SZ, WS_PAR)
    srd(e, 20, 4, 5, AGG_SZ, WS_AGG)
    e("v_lshlrev_b32 v4, 5, v3")
    e("buffer_load_dwordx4 v[8:11], v4, s[16:19], 0 offen offset:8")
    e("v_cmp_gt_u32 vcc, 640, v3")
    e("s_mov_b64 s[24:25], vcc")
    e("v_cmp_gt_u32 vcc, 96, v2")
    e("s_and_b64 s[24:25], s[24:25], vcc")
    e("v_lshlrev_b32 v5, 6, v2")
    e("v_min_u32 v5, 6080, v5")
    e("s_barrier")
    for m in range(4):
        e(f"ds_read_b128 {vr(16+4*m,4)}, v5 offset:{AGR+16*m}")
        e(f"ds_read_b128 {vr(32+4*m,4)}, v5 offset:{AGI+16*m}")
    e("s_waitcnt vmcnt(0) lgkmcnt(0)")
    e("v_mov_b32 v12, v16")
    e("v_mov_b32 v13, v32")
    for q in range(1, 16):
        e(f"v_fma_f32 v14, v8, v12, v{16+q}")
        e(f"v_fma_f32 v15, v8, v13, v{32+q}")
        e("v_fma_f32 v14, -v9, v13, v14")
        e("v_fma_f32 v13, v9, v12, v15")
        e("v_mov_b32 v12, v14")
    e("v_mov_b32 v14, 0x7fc00000")
    e("v_cmp_eq_u32 vcc, -1, v12")
    e("s_nop 1")
    e("v_cndmask_b32 v12, v12, v14, vcc")
    e("v_cmp_eq_u32 vcc, -1, v13")
    e("s_nop 1")
    e("v_cndmask_b32 v13, v13, v14, vcc")
    e(f"s_mul_i32 s{S_T0}, s{S_TB}, {640*8}")
    e("v_lshlrev_b32 v6, 3, v3")
    e(f"v_add_u32 v6, s{S_T0}, v6")
    e("s_mov_b64 s[26:27], exec")
    e("s_mov_b64 exec, s[24:25]")
    e("s_cbranch_execz k1_chain_nopub")
    e("buffer_store_dwordx2 v[12:13], v6, s[20:23], 0 offen sc1")
    e.label("k1_chain_nopub")
    e("s_mov_b64 exec, s[26:27]")
    for m in range(15):
        e(f"v_subrev_u32 v{48+m}, {(m+1)*5120}, v6")
    e(f"s_mov_b32 s{S_CNT}, 0")
    e.label("k1_poll")
    e(f"s_add_u32 s{S_CNT}, s{S_CNT}, 1")
    e(f"s_cmp_gt_u32 s{S_CNT}, 200000")
    e("s_cbranch_scc1 k1_poll_out")
    for m in range(15):
        e(f"buffer_load_dwordx2 {vr(64+2*m,2)}, v{48+m}, s[20:23], 0 offen sc1")
    e("s_waitcnt vmcnt(0)")
    e("s_mov_b64 s[28:29], 0")
    for m in range(30):
        e(f"v_cmp_eq_u32 vcc, -1, v{64+m}")
        e("s_or_b64 s[28:29], s[28:29], vcc")
    e("s_and_b64 s[28:29], s[28:29], s[24:25]")
    e("s_cbranch_scc1 k1_poll")
    e.label("k1_poll_out")
    e(f"v_mov_b32 v12, v{64+28}")
    e(f"v_mov_b32 v13, v{64+29}")
    for m in range(13, -1, -1):
        e(f"v_fma_f32 v14, v10, v12, v{64+2*m}")
        e(f"v_fma_f32 v15, v10, v13, v{65+2*m}")
        e("v_fma_f32 v14, -v11, v13, v14")
        e("v_fma_f32 v13, v11, v12, v15")
        e("v_mov_b32 v12, v14")
    e("v_mov_b32 v96, v12")
    e("v_mov_b32 v112, v13")
    for q in range(15):
        e(f"v_fma_f32 v{97+q}, v8, v{96+q}, v{16+q}")
        e(f"v_fma_f32 v{113+q}, v8, v{112+q}, v{32+q}")
        e(f"v_fma_f32 v{97+q}, -v9, v{112+q}, v{97+q}")
        e(f"v_fma_f32 v{113+q}, v9, v{96+q}, v{113+q}")
    e("v_cmp_gt_u32 vcc, 96, v2")
    e("s_and_saveexec_b64 s[26:27], vcc")
    for m in range(4):
        e(f"ds_write_b128 v5, {vr(96+4*m,4)} offset:{TR+16*m}")
        e(f"ds_write_b128 v5, {vr(112+4*m,4)} offset:{TI+16*m}")
    e("s_mov_b64 exec, s[26:27]")
    e("s_waitcnt lgkmcnt(0)")
    e("s_barrier")
    e("s_endpgm")

VA = [2, 3]
VBB = [4, 5, 6, 7]
CA = [8, 9]
CB_ = [10, 11, 12, 13]

def frag_reads(kind, ks, buf):
    r = []
    for j in range(4):
        r.append(f"ds_read_b128 {vr(fa(buf,j),4)}, v{CA[ks]} offset:{j*2048}")
    if kind == "bu":
        for c in range(6):
            r.append(f"ds_read_b128 {vr(fb(buf,c),4)}, v{CB_[ks]} offset:{c*2048}")
    else:
        for c in range(6):
            for h in range(2):
                off = ks * 12288 + h * 1536 + (128 if c >= 4 else 0)
                r.append(f"ds_read_b64_tr_b16 {vr(fb(buf,c)+2*h,2)}, v{CB_[c&3]} offset:{off}")
    a, b = r[:4], r[4:]
    return [a[0]] + b + a[1:]

def mfmas(buf):
    return [f"v_mfma_f32_16x16x32_bf16 {vr(acc(j,c),4)}, {vr(fa(buf,j),4)}, {vr(fb(buf,c),4)}, {vr(acc(j,c),4)}"
            for j in range(4) for c in range(6)]

def upd_cur(e, kind):
    for i in range(2):
        e(f"v_add_u32 v{CA[i]}, s{S_SLOT}, v{VA[i]}")
    for i in range(2 if kind == "bu" else 4):
        e(f"v_add_u32 v{CB_[i]}, s{S_SLOT}, v{VBB[i]}")

def gen_mainloop(e, kind):
    for i in range(96):
        e(f"v_mov_b32 v{ACC0+i}, 0")
    e(f"s_mov_b32 s{S_SLOT}, 0")
    upd_cur(e, kind)
    e("s_barrier")
    for r in frag_reads(kind, 0, 0):
        e(r)
    e(f"s_mov_b32 s{S_CNT}, 0")
    e("s_waitcnt lgkmcnt(0)")
    lab = f"k1_loop_{kind}"
    e.label(lab)
    m = mfmas(0); r = frag_reads(kind, 1, 1)
    for i, x in enumerate(m):
        e(x)
        if i < len(r):
            e(r[i])
    e(f"s_add_u32 s{S_SLOT}, s{S_SLOT}, {SLOT1}")
    e(f"s_cmp_eq_u32 s{S_SLOT}, {S1*SLOT1}")
    e(f"s_cselect_b32 s{S_SLOT}, 0, s{S_SLOT}")
    e("s_waitcnt lgkmcnt(0)")
    m = mfmas(1); r = frag_reads(kind, 0, 0)
    PRE = 2
    for x in m[:PRE]:
        e(x)
    upd_cur(e, kind)
    e("s_barrier")
    for i, x in enumerate(m[PRE:]):
        e(x)
        if i < len(r):
            e(r[i])
    e(f"s_add_u32 s{S_CNT}, s{S_CNT}, 1")
    e(f"s_cmp_lt_u32 s{S_CNT}, {NK1}")
    e("s_waitcnt lgkmcnt(0)")
    e(f"s_cbranch_scc1 {lab}")
    e("s_nop 7")
    e("s_nop 3")

def pk(op, d, a, b, c=None, asel=None, nega=False):
    n = 3 if c is not None else 2
    s = f"v_pk_{op}_f32 {vr(d,2)}, {vr(a,2)}, {vr(b,2)}"
    if c is not None:
        s += f", {vr(c,2)}"
    if asel is not None:
        lo = [asel] + [0] * (n - 1)
        hi = [asel] + [1] * (n - 1)
        s += " op_sel:[%s] op_sel_hi:[%s]" % (",".join(map(str, lo)), ",".join(map(str, hi)))
    if nega:
        ng = [1] + [0] * (n - 1)
        s += " neg_lo:[%s] neg_hi:[%s]" % (",".join(map(str, ng)), ",".join(map(str, ng)))
    return s

def gen_k1(e):
    khead(e, "k1_kernel")
    e("s_cmp_ge_u32 s2, 256")
    e("s_cbranch_scc1 k1_done")
    e(f"s_load_dwordx2 s[4:5], s[0:1], {KA['ws']}")
    e(f"s_load_dwordx2 s[6:7], s[0:1], {KA['bre']}")
    e(f"s_load_dwordx2 s[30:31], s[0:1], {KA['bim']}")
    e(f"s_load_dwordx2 s[32:33], s[0:1], {KA['w1']}")
    e("v_lshrrev_b32 v1, 6, v0")
    e(f"s_and_b32 s{S_T0}, s2, 7")
    e(f"s_lshr_b32 s{S_T1}, s2, 3")
    e(f"v_readfirstlane_b32 s{S_W}, v1")
    e(f"s_and_b32 s{S_TB}, s{S_T0}, 1")
    e(f"s_lshl_b32 s{S_TB}, s{S_TB}, 3")
    e(f"s_and_b32 s{S_CB}, s{S_T1}, 7")
    e(f"s_add_u32 s{S_TB}, s{S_TB}, s{S_CB}")
    e(f"s_lshr_b32 s{S_CB}, s{S_T0}, 1")
    e(f"s_lshl_b32 s{S_CB}, s{S_CB}, 2")
    e(f"s_lshr_b32 s{S_T1}, s{S_T1}, 3")
    e(f"s_add_u32 s{S_CB}, s{S_CB}, s{S_T1}")
    e(f"s_cmp_ge_u32 s{S_W}, 4")
    e("s_cbranch_scc1 k1_loader")
    e(f"s_and_b32 s{S_WT}, s{S_W}, 1")
    e(f"s_lshr_b32 s{S_WC}, s{S_W}, 1")
    e("v_and_b32 v1, 63, v0")
    e("v_lshrrev_b32 v14, 4, v1")
    e("v_and_b32 v15, 15, v1")
    e("v_lshrrev_b32 v16, 1, v15")
    e("v_xor_b32 v16, v16, v14")
    e("v_lshlrev_b32 v16, 4, v16")
    e("v_lshl_add_u32 v16, v15, 7, v16")
    e(f"s_lshl_b32 s{S_T0}, s{S_WT}, 13")
    e(f"v_add_u32 v{VA[0]}, s{S_T0}, v16")
    e(f"v_xor_b32 v{VA[1]}, 64, v{VA[0]}")
    e(f"s_lshl_b32 s{S_T0}, s{S_TB}, 8")
    e(f"s_lshl_b32 s{S_T1}, s{S_WT}, 7")
    e(f"s_add_u32 s{S_T0}, s{S_T0}, s{S_T1}")
    e("v_lshlrev_b32 v17, 5, v14")
    e("v_lshl_add_u32 v17, v15, 12, v17")
    e(f"v_add_u32 v17, s{S_T0}, v17")
    e(f"s_cmp_ge_u32 s{S_CB}, {NBU_CB}")
    e("s_cbranch_scc1 k1_ffn")
    e(f"s_mul_i32 s{S_T0}, s{S_WC}, {96*128}")
    e(f"s_add_u32 s{S_T0}, s{S_T0}, 16384")
    e(f"v_add_u32 v{VBB[0]}, s{S_T0}, v16")
    e(f"v_xor_b32 v{VBB[1]}, 64, v{VBB[0]}")
    e(f"s_mul_i32 s54, s{S_CB}, 96")
    e(f"s_mul_i32 s{S_T0}, s{S_WC}, 48")
    e(f"s_add_u32 s54, s54, s{S_T0}")
    e("s_waitcnt lgkmcnt(0)")
    srd(e, 16, 4, 5, PAR_SZ, WS_PAR)
    srd(e, 20, 4, 5, HT_SZ, WS_HT)
    e("v_add_u32 v18, s54, v15")
    e("v_lshlrev_b32 v18, 5, v18")
    for c in range(3):
        e(f"buffer_load_dwordx2 {vr(20+4*c,2)}, v18, s[16:19], 0 offen offset:{c*512}")
        e(f"buffer_load_dwordx2 {vr(22+4*c,2)}, v18, s[16:19], 0 offen offset:{c*512+24}")
    e("s_lshl_b32 s55, s54, 12")
    e("v_add_u32 v17, s55, v17")
    gen_mainloop(e, "bu")
    e("s_waitcnt vmcnt(0)")
    RP = 160
    def Rn(c, s): return RP + c * 16 + s * 2
    def Ro(c, s): return acc(s >> 1, c) + 2 * (s & 1)
    def Io(c, s): return acc(s >> 1, c + 3) + 2 * (s & 1)
    AG = 208
    for s in range(8):
        for c in range(3):
            Lp, Cp = 20 + 4 * c, 22 + 4 * c
            e(pk("mul", Rn(c, s), Cp, Ro(c, s), asel=0))
        for c in range(3):
            Lp, Cp = 20 + 4 * c, 22 + 4 * c
            e(pk("fma", Rn(c, s), Cp, Io(c, s), Rn(c, s), asel=1, nega=True))
        for c in range(3):
            Lp, Cp = 20 + 4 * c, 22 + 4 * c
            e(pk("mul", Io(c, s), Cp, Io(c, s), asel=0, nega=True))
        for c in range(3):
            Lp, Cp = 20 + 4 * c, 22 + 4 * c
            e(pk("fma", Io(c, s), Cp, Ro(c, s), Io(c, s), asel=1, nega=True))
        if s >= 1:
            def prev(c):
                if s == 1:
                    return Rn(c, 0), Io(c, 0)
                pp = (s - 1) & 1
                return AG + c * 8 + pp * 4, AG + c * 8 + pp * 4 + 2
            pp = s & 1
            for c in range(3):
                ar, ai = prev(c); Lp = 20 + 4 * c
                e(pk("fma", AG + c * 8 + pp * 4, Lp, ar, Rn(c, s), asel=0))
            for c in range(3):
                ar, ai = prev(c); Lp = 20 + 4 * c
                e(pk("fma", AG + c * 8 + pp * 4 + 2, Lp, ai, Io(c, s), asel=0))
            for c in range(3):
                ar, ai = prev(c); Lp = 20 + 4 * c
                e(pk("fma", AG + c * 8 + pp * 4, Lp, ai, AG + c * 8 + pp * 4, asel=1, nega=True))
            for c in range(3):
                ar, ai = prev(c); Lp = 20 + 4 * c
                e(pk("fma", AG + c * 8 + pp * 4 + 2, Lp, ar, AG + c * 8 + pp * 4 + 2, asel=1))
    e(f"s_mul_i32 s{S_T0}, s{S_WC}, {48*64}")
    e(f"s_lshl_b32 s{S_T1}, s{S_WT}, 5")
    e(f"s_add_u32 s{S_T0}, s{S_T0}, s{S_T1}")
    e("v_lshlrev_b32 v19, 3, v14")
    e("v_lshl_add_u32 v19, v15, 6, v19")
    e(f"v_add_u32 v19, s{S_T0}, v19")
    for c in range(3):
        e(f"ds_write_b64 v19, {vr(AG+c*8+4,2)} offset:{AGR+c*1024}")
        e(f"ds_write_b64 v19, {vr(AG+c*8+6,2)} offset:{AGI+c*1024}")
    e("s_waitcnt lgkmcnt(0)")
    e("s_barrier")
    e("s_barrier")
    for c in range(3):
        e(f"ds_read_b64 {vr(AG+c*8,2)}, v19 offset:{TR+c*1024}")
        e(f"ds_read_b64 {vr(AG+c*8+2,2)}, v19 offset:{TI+c*1024}")
    e("s_waitcnt lgkmcnt(0)")
    for s in range(8):
        def prev(c):
            if s == 0:
                return AG + c * 8, AG + c * 8 + 2
            return Rn(c, s - 1), Io(c, s - 1)
        for c in range(3):
            hr, hi = prev(c); Lp = 20 + 4 * c
            e(pk("fma", Rn(c, s), Lp, hr, Rn(c, s), asel=0))
        for c in range(3):
            hr, hi = prev(c); Lp = 20 + 4 * c
            e(pk("fma", Io(c, s), Lp, hi, Io(c, s), asel=0))
        for c in range(3):
            hr, hi = prev(c); Lp = 20 + 4 * c
            e(pk("fma", Rn(c, s), Lp, hi, Rn(c, s), asel=1, nega=True))
        for c in range(3):
            hr, hi = prev(c); Lp = 20 + 4 * c
            e(pk("fma", Io(c, s), Lp, hr, Io(c, s), asel=1))
    OUT = 32
    for c in range(3):
        skip = e.newlabel("k1_skip")
        e(f"s_add_u32 s{S_T0}, s54, {16*c}")
        e(f"s_cmp_ge_u32 s{S_T0}, 640")
        e(f"s_cbranch_scc1 {skip}")
        for part in range(2):
            X = (lambda s: Rn(c, s)) if part == 0 else (lambda s: Io(c, s))
            o = OUT + ((c * 2 + part) & 3) * 8
            for u in range(2):
                for j in range(4):
                    e(f"v_cvt_pk_bf16_f32 v{o+u*4+j}, v{X(2*j)+u}, v{X(2*j+1)+u}")
            e(f"s_mov_b32 s{S_T0}, {c*65536 + part*640*4096}")
            e(f"buffer_store_dwordx4 {vr(o,4)}, v17, s[20:23], s{S_T0} offen")
            e(f"buffer_store_dwordx4 {vr(o+4,4)}, v17, s[20:23], s{S_T0} offen offset:16")
        e.label(skip)
    e("s_endpgm")
    e.label("k1_ffn")
    e("v_bfe_u32 v18, v1, 2, 2")
    e("v_and_b32 v19, 3, v1")
    e("v_lshl_add_u32 v20, v14, 3, v18")
    e("v_mul_u32_u24 v20, 384, v20")
    e("v_lshl_add_u32 v20, v19, 3, v20")
    e("v_bfe_u32 v21, v18, 1, 1")
    e("v_and_b32 v22, 1, v14")
    e("v_lshl_add_u32 v21, v22, 1, v21")
    for c in range(4):
        e(f"s_mul_i32 s{S_T0}, s{S_WC}, 6")
        e(f"s_add_u32 s{S_T0}, s{S_T0}, {c}")
        e(f"s_and_b32 s{S_T1}, s{S_T0}, 3")
        e(f"s_lshr_b32 s{S_T0}, s{S_T0}, 2")
        e(f"s_lshl_b32 s{S_T0}, s{S_T0}, 7")
        e(f"s_add_u32 s{S_T0}, s{S_T0}, 16384")
        e(f"v_xor_b32 v22, s{S_T1}, v21")
        e("v_lshl_add_u32 v22, v22, 5, v20")
        e(f"v_add_u32 v{VBB[c]}, s{S_T0}, v22")
    e(f"s_sub_u32 s54, s{S_CB}, {NBU_CB}")
    e("s_mul_i32 s54, s54, 192")
    e(f"s_mul_i32 s{S_T0}, s{S_WC}, 96")
    e(f"s_add_u32 s54, s54, s{S_T0}")
    e("s_lshl_b32 s55, s54, 12")
    e("v_add_u32 v17, s55, v17")
    e("s_waitcnt lgkmcnt(0)")
    srd(e, 20, 4, 5, H1T_SZ, WS_H1T)
    gen_mainloop(e, "ffn")
    for c in range(6):
        o = 160 + (c & 3) * 8
        for u in range(2):
            for j in range(4):
                e(f"v_cvt_pk_bf16_f32 v{o+u*4+j}, v{acc(j,c)+u}, v{acc(j,c)+u+2}")
        for i in range(8):
            e(f"v_pk_max_i16 v{o+i}, v{o+i}, 0")
        e(f"s_mov_b32 s{S_T0}, {c*65536}")
        e(f"buffer_store_dwordx4 {vr(o,4)}, v17, s[20:23], s{S_T0} offen")
        e(f"buffer_store_dwordx4 {vr(o+4,4)}, v17, s[20:23], s{S_T0} offen offset:16")
    e("s_endpgm")
    gen_loader(e)
    e.label("k1_done")
    e("s_endpgm")
```

```python
from gen import *
from gen_k1 import vr

S2 = 6
SLOT2 = 26624
K2_LDS = S2 * SLOT2
K2_VGPR = 200
NKY, NKF = 20, 27

ACC0 = 32
def acc(dt, tt): return ACC0 + (dt * 4 + tt) * 4
FR0 = 112
def fw(b, dt): return FR0 + b * 36 + dt * 4
def fx(b, tt): return FR0 + b * 36 + 20 + tt * 4

S_TB, S_DB, S_W, S_TY = 40, 41, 42, 43
S_SLOT, S_KA, S_KB, S_STRB = 44, 45, 46, 47
S_LA, S_LB, S_T0, S_T1 = 48, 49, 50, 51
S_CNT, S_NK = 52, 53
S_WT, S_KP = 54, 55

def issue_stage(e, nb):
    e(f"s_add_u32 s{S_T0}, s{S_SLOT}, s{S_LA}")
    for i in range(4):
        e(f"s_add_u32 m0, s{S_T0}, {i*1024}")
        e("s_nop 0")
        e(f"buffer_load_dwordx4 v{4+i}, s[8:11], s{S_KA} offen lds")
    e(f"s_add_u32 s{S_T0}, s{S_SLOT}, s{S_LB}")
    for i in range(nb):
        e(f"s_add_u32 m0, s{S_T0}, {i*1024}")
        e("s_nop 0")
        e(f"buffer_load_dwordx4 v{10+i}, s[12:15], s{S_KB} offen lds")
    e(f"s_add_u32 s{S_KA}, s{S_KA}, {64*4096}")
    e(f"s_add_u32 s{S_KB}, s{S_KB}, s{S_STRB}")
    e(f"s_cmp_eq_u32 s{S_KB}, 1280")
    e("s_cselect_b32 s12, s34, s12")
    e("s_cselect_b32 s13, s35, s13")
    e(f"s_cselect_b32 s{S_KB}, 0, s{S_KB}")
    e(f"s_add_u32 s{S_SLOT}, s{S_SLOT}, {SLOT2}")
    e(f"s_cmp_eq_u32 s{S_SLOT}, {S2*SLOT2}")
    e(f"s_cselect_b32 s{S_SLOT}, 0, s{S_SLOT}")

def loader_loop(e, nb):
    n = 4 + nb
    sfx = f"{nb}"
    e(f"s_mov_b32 s{S_CNT}, 0")
    e.label(f"k2_ld_pro{sfx}")
    issue_stage(e, nb)
    e(f"s_add_u32 s{S_CNT}, s{S_CNT}, 1")
    e(f"s_cmp_lt_u32 s{S_CNT}, {S2}")
    e(f"s_cbranch_scc1 k2_ld_pro{sfx}")
    e(f"s_waitcnt vmcnt({n*(S2-1)})")
    e("s_barrier")
    e(f"s_mov_b32 s{S_CNT}, 1")
    e(f"s_sub_u32 s{S_T1}, s{S_NK}, {S2}")
    e.label(f"k2_ld_loop{sfx}")
    e(f"s_waitcnt vmcnt({n*(S2-2)})")
    e("s_barrier")
    issue_stage(e, nb)
    e(f"s_add_u32 s{S_CNT}, s{S_CNT}, 1")
    e(f"s_cmp_le_u32 s{S_CNT}, s{S_T1}")
    e(f"s_cbranch_scc1 k2_ld_loop{sfx}")
    for r in range(S2 - 2, -1, -1):
        e(f"s_waitcnt vmcnt({n*r})")
        e("s_barrier")
    e("s_barrier")
    e("s_endpgm")

def gen_loader(e):
    e.label("k2_loader")
    e(f"s_sub_u32 s{S_W}, s{S_W}, 4")
    e("v_and_b32 v1, 63, v0")
    e("v_lshrrev_b32 v2, 4, v1")
    e("v_and_b32 v3, 15, v1")
    e(f"s_lshl_b32 s{S_T0}, s{S_W}, 4")
    e(f"s_lshl_b32 s{S_T1}, s{S_TB}, 8")
    for i in range(4):
        e(f"v_add_u32 v20, s{S_T0}, v2")
        e(f"v_add_u32 v20, {4*i}, v20")
        e("v_and_b32 v21, 3, v20")
        e("v_bfe_u32 v22, v20, 3, 1")
        e("v_lshl_add_u32 v21, v22, 2, v21")
        e("v_lshlrev_b32 v21, 1, v21")
        e("v_xor_b32 v21, v21, v3")
        e("v_lshlrev_b32 v21, 4, v21")
        e("v_lshl_add_u32 v21, v20, 12, v21")
        e(f"v_add_u32 v{4+i}, s{S_T1}, v21")
    e(f"s_lshl_b32 s{S_LA}, s{S_W}, 12")
    e(f"s_mul_i32 s{S_T0}, s{S_W}, 3")
    e(f"s_lshl_b32 s{S_T1}, s{S_W}, 1")
    e(f"s_add_u32 s{S_T1}, s{S_T1}, 2")
    e(f"s_cmp_ge_u32 s{S_W}, 2")
    e(f"s_cselect_b32 s56, s{S_T1}, s{S_T0}")
    e(f"s_lshl_b32 s{S_LB}, s56, 10")
    e(f"s_add_u32 s{S_LB}, s{S_LB}, 16384")
    e("s_waitcnt lgkmcnt(0)")
    e(f"s_cmp_eq_u32 s{S_TY}, 0")
    e("s_cbranch_scc0 k2_loader_f")
    srd(e, 8, 4, 5, HT_SZ, WS_HT)
    srd(e, 12, 6, 7, D * P * 2)
    e(f"s_mov_b32 s{S_STRB}, 128")
    e(f"s_mov_b32 s{S_NK}, {NKY}")
    e("v_lshrrev_b32 v2, 3, v1")
    e("v_and_b32 v3, 7, v1")
    e("s_lshl_b32 s57, s56, 3")
    e(f"s_mul_i32 s{S_T0}, s{S_DB}, 80")
    for i in range(3):
        e("v_add_u32 v20, s57, v2")
        e(f"v_add_u32 v20, {8*i}, v20")
        e("v_bfe_u32 v21, v20, 1, 3")
        e("v_xor_b32 v21, v21, v3")
        e(f"v_add_u32 v20, s{S_T0}, v20")
        e("v_mul_u32_u24 v20, 1280, v20")
        e(f"v_lshl_add_u32 v{10+i}, v21, 4, v20")
    e("s_branch k2_loader_go")
    e.label("k2_loader_f")
    srd(e, 8, 4, 5, H1T_SZ, WS_H1T)
    srd(e, 12, 32, 33, F * D * 2)
    e(f"s_mov_b32 s{S_STRB}, {64*1280}")
    e(f"s_mov_b32 s{S_NK}, {NKF}")
    e("s_lshl_b32 s57, s56, 6")
    e(f"s_mul_i32 s{S_T0}, s{S_DB}, 160")
    for i in range(3):
        e("v_add_u32 v20, s57, v1")
        e(f"v_add_u32 v20, {64*i}, v20")
        e("v_mul_u32_u24 v21, 6554, v20")
        e("v_lshrrev_b32 v21, 16, v21")
        e("v_mul_u32_u24 v22, 10, v21")
        e("v_sub_u32 v20, v20, v22")
        e("v_and_b32 v22, 0xfffffff3, v21")
        e("v_bfe_u32 v23, v21, 2, 1")
        e("v_lshl_add_u32 v22, v23, 3, v22")
        e("v_bfe_u32 v23, v21, 3, 1")
        e("v_lshl_add_u32 v22, v23, 2, v22")
        e("v_mul_u32_u24 v22, 1280, v22")
        e("v_lshl_add_u32 v22, v20, 4, v22")
        e(f"v_add_u32 v{10+i}, s{S_T0}, v22")
    e.label("k2_loader_go")
    e(f"s_mov_b32 s{S_SLOT}, 0")
    e(f"s_mov_b32 s{S_KA}, 0")
    e(f"s_mov_b32 s{S_KB}, 0")
    e(f"s_cmp_ge_u32 s{S_W}, 2")
    e("s_cbranch_scc1 k2_loader_2")
    loader_loop(e, 3)
    e.label("k2_loader_2")
    loader_loop(e, 2)

VX = [2, 3, 4, 5]
VW = 6
CX = [8, 9, 10, 11]
CW = 12

def frag_reads(kind, buf):
    w = []
    if kind == "y":
        for dt in range(5):
            w.append(f"ds_read_b128 {vr(fw(buf,dt),4)}, v{CW} offset:{dt*2048}")
    else:
        for dt in range(5):
            for h in range(2):
                w.append(f"ds_read_b64_tr_b16 {vr(fw(buf,dt)+2*h,2)}, v{CW} offset:{h*1280+dt*32}")
    x = []
    for tt in range(4):
        for h in range(2):
            x.append(f"ds_read_b64_tr_b16 {vr(fx(buf,tt)+2*h,2)}, v{CX[tt]} offset:{h*1024}")
    return x + w

def mfmas(buf):
    return [f"v_mfma_f32_16x16x32_bf16 {vr(acc(dt,tt),4)}, {vr(fw(buf,dt),4)}, {vr(fx(buf,tt),4)}, {vr(acc(dt,tt),4)}"
            for dt in range(5) for tt in range(4)]

def upd_cur(e):
    for i in range(4):
        e(f"v_add_u32 v{CX[i]}, s{S_SLOT}, v{VX[i]}")
    e(f"v_add_u32 v{CW}, s{S_SLOT}, v{VW}")

def adv_slot(e):
    e(f"s_add_u32 s{S_SLOT}, s{S_SLOT}, {SLOT2}")
    e(f"s_cmp_eq_u32 s{S_SLOT}, {S2*SLOT2}")
    e(f"s_cselect_b32 s{S_SLOT}, 0, s{S_SLOT}")

def gen_mainloop(e, kind, nk):
    for i in range(80):
        e(f"v_mov_b32 v{ACC0+i}, 0")
    e(f"s_mov_b32 s{S_SLOT}, 0")
    upd_cur(e)
    e("s_barrier")
    for r in frag_reads(kind, 0):
        e(r)
    e(f"s_mov_b32 s{S_CNT}, 0")
    lab = f"k2_loop_{kind}"
    e.label(lab)
    for half in range(2):
        adv_slot(e)
        e("s_waitcnt lgkmcnt(0)")
        m = mfmas(half); r = frag_reads(kind, half ^ 1)
        PRE = 2
        for x in m[:PRE]:
            e(x)
        upd_cur(e)
        e("s_barrier")
        for i, x in enumerate(m[PRE:]):
            e(x)
            if i < len(r):
                e(r[i])
        e(f"s_add_u32 s{S_CNT}, s{S_CNT}, 1")
        e(f"s_cmp_lt_u32 s{S_CNT}, {nk}")
        if half == 0:
            if nk & 1:
                e(f"s_cbranch_scc0 {lab}_end")
        else:
            e(f"s_cbranch_scc1 {lab}")
    e.label(f"{lab}_end")
    e("s_waitcnt lgkmcnt(0)")
    e("s_nop 7")
    e("s_nop 3")

def gen_reduce(e):
    e(f"s_mul_i32 s{S_T0}, s{S_W}, 10240")
    e("v_lshlrev_b32 v20, 4, v1")
    e(f"v_add_u32 v20, s{S_T0}, v20")
    e(f"s_xor_b32 s{S_T1}, s{S_W}, 2")
    e(f"s_mul_i32 s{S_T1}, s{S_T1}, 10240")
    e("v_lshlrev_b32 v21, 4, v1")
    e(f"v_add_u32 v21, s{S_T1}, v21")
    e(f"s_cmp_eq_u32 s{S_KP}, 0")
    l1 = e.newlabel("k2_red"); l2 = e.newlabel("k2_red")
    e(f"s_cbranch_scc0 {l1}")
    for dt in range(5):
        for u in range(2):
            e(f"ds_write_b128 v20, {vr(acc(dt,2+u),4)} offset:{(dt*2+u)*1024}")
    e(f"s_branch {l2}")
    e.label(l1)
    for dt in range(5):
        for u in range(2):
            e(f"ds_write_b128 v20, {vr(acc(dt,u),4)} offset:{(dt*2+u)*1024}")
    e("s_nop 1")
    for dt in range(5):
        for u in range(2):
            for i in range(4):
                e(f"v_mov_b32 v{acc(dt,u)+i}, v{acc(dt,2+u)+i}")
    e.label(l2)
    e("s_waitcnt lgkmcnt(0)")
    e("s_barrier")
    for dt in range(5):
        for u in range(2):
            e(f"ds_read_b128 {vr(acc(dt,2+u),4)}, v21 offset:{(dt*2+u)*1024}")
    e("s_waitcnt lgkmcnt(0)")
    for dt in range(5):
        for u in range(2):
            for i in range(0, 4, 2):
                e(f"v_pk_add_f32 {vr(acc(dt,u)+i,2)}, {vr(acc(dt,u)+i,2)}, {vr(acc(dt,2+u)+i,2)}")

def gen_k2(e):
    khead(e, "k2_kernel")
    e("s_cmp_ge_u32 s2, 256")
    e("s_cbranch_scc1 k2_done")
    e(f"s_load_dwordx2 s[4:5], s[0:1], {KA['ws']}")
    e(f"s_load_dwordx2 s[6:7], s[0:1], {KA['cre']}")
    e(f"s_load_dwordx2 s[34:35], s[0:1], {KA['cim']}")
    e(f"s_load_dwordx2 s[32:33], s[0:1], {KA['w2']}")
    e(f"s_load_dwordx2 s[36:37], s[0:1], {KA['x']}")
    e(f"s_load_dwordx2 s[38:39], s[0:1], {KA['dskip']}")
    e(f"s_load_dwordx2 s[30:31], s[0:1], {KA['out']}")
    e("v_lshrrev_b32 v1, 6, v0")
    e(f"s_and_b32 s{S_T0}, s2, 7")
    e(f"s_lshr_b32 s{S_T1}, s2, 3")
    e(f"v_readfirstlane_b32 s{S_W}, v1")
    e(f"s_lshr_b32 s{S_TY}, s{S_T0}, 2")
    e(f"s_and_b32 s{S_TB}, s{S_T0}, 3")
    e(f"s_lshl_b32 s{S_TB}, s{S_TB}, 2")
    e(f"s_lshr_b32 s{S_DB}, s{S_T1}, 3")
    e(f"s_add_u32 s{S_TB}, s{S_TB}, s{S_DB}")
    e(f"s_and_b32 s{S_DB}, s{S_T1}, 7")
    e(f"s_cmp_ge_u32 s{S_W}, 4")
    e("s_cbranch_scc1 k2_loader")
    e(f"s_and_b32 s{S_WT}, s{S_W}, 1")
    e(f"s_lshr_b32 s{S_KP}, s{S_W}, 1")
    e("v_and_b32 v1, 63, v0")
    e("v_lshrrev_b32 v14, 4, v1")
    e("v_and_b32 v15, 15, v1")
    e("v_bfe_u32 v16, v1, 2, 2")
    e("v_and_b32 v17, 3, v1")
    e(f"s_lshl_b32 s{S_T0}, s{S_KP}, 13")
    e("v_lshl_add_u32 v18, v14, 3, v16")
    e("v_lshlrev_b32 v18, 8, v18")
    e("v_lshl_add_u32 v18, v17, 3, v18")
    e(f"v_add_u32 v18, s{S_T0}, v18")
    e("v_and_b32 v19, 1, v14")
    e(f"v_xor_b32 v19, s{S_WT}, v19")
    e("v_lshl_add_u32 v18, v19, 7, v18")
    for tt in range(4):
        e(f"v_xor_b32 v19, {tt}, v16")
        e(f"v_lshl_add_u32 v{VX[tt]}, v19, 5, v18")
    e(f"s_lshl_b32 s{S_T0}, s{S_TB}, 7")
    e(f"s_lshl_b32 s{S_T1}, s{S_WT}, 6")
    e(f"s_add_u32 s{S_T0}, s{S_T0}, s{S_T1}")
    e(f"s_lshl_b32 s{S_T1}, s{S_KP}, 5")
    e(f"s_add_u32 s{S_T0}, s{S_T0}, s{S_T1}")
    e(f"v_add_u32 v22, s{S_T0}, v15")
    e("v_mul_u32_u24 v22, 640, v22")
    e(f"s_mul_i32 s{S_T0}, s{S_DB}, 80")
    e("v_lshl_add_u32 v23, v14, 2, 0")
    e(f"v_add_u32 v23, s{S_T0}, v23")
    e("v_add_u32 v22, v22, v23")
    e("v_lshlrev_b32 v24, 1, v22")
    e("v_lshlrev_b32 v25, 2, v22")
    e("v_lshlrev_b32 v26, 1, v23")
    e(f"s_lshl_b32 s58, s{S_TB}, 3")
    e(f"s_add_u32 s58, s58, s{S_DB}")
    e("s_lshl_b32 s58, s58, 7")
    e("s_waitcnt lgkmcnt(0)")
    srd(e, 16, 4, 5, S_SZ, WS_S)
    srd(e, 24, 4, 5, FLG_SZ, WS_FLG)
    e(f"s_cmp_eq_u32 s{S_TY}, 0")
    e("s_cbranch_scc0 k2_f")
    e("v_lshrrev_b32 v18, 1, v15")
    e(f"s_lshl_b32 s{S_T0}, s{S_KP}, 2")
    e(f"v_add_u32 v19, s{S_T0}, v14")
    e("v_xor_b32 v18, v18, v19")
    e("v_lshlrev_b32 v18, 4, v18")
    e("v_lshl_add_u32 v18, v15, 7, v18")
    e(f"v_add_u32 v{VW}, 16384, v18")
    srd(e, 8, 4, 5, XN_SZ, WS_XN)
    srd(e, 12, 38, 39, D * 2)
    gen_mainloop(e, "y", NKY)
    for dt in range(5):
        for u in range(2):
            e(f"buffer_load_dwordx2 {vr(112+(dt*2+u)*2,2)}, v24, s[8:11], 0 offen offset:{dt*32}" if u == 0 else
              f"buffer_load_dwordx2 {vr(112+(dt*2+u)*2,2)}, v27, s[8:11], 0 offen offset:{dt*32}")
            if dt == 0 and u == 0:
                e(f"v_add_u32 v27, {16*1280}, v24")
        e(f"buffer_load_dwordx2 {vr(140+dt*2,2)}, v26, s[12:15], 0 offen offset:{dt*32}")
    gen_reduce(e)
    e("s_waitcnt vmcnt(0)")
    e(f"v_add_u32 v28, {16*2560}, v25")
    for dt in range(5):
        e(f"v_lshlrev_b32 v150, 16, v{140+dt*2}")
        e(f"v_and_b32 v151, 0xffff0000, v{140+dt*2}")
        e(f"v_lshlrev_b32 v152, 16, v{141+dt*2}")
        e(f"v_and_b32 v153, 0xffff0000, v{141+dt*2}")
        for u in range(2):
            xr = 112 + (dt * 2 + u) * 2
            e(f"v_lshlrev_b32 v154, 16, v{xr}")
            e(f"v_and_b32 v155, 0xffff0000, v{xr}")
            e(f"v_lshlrev_b32 v156, 16, v{xr+1}")
            e(f"v_and_b32 v157, 0xffff0000, v{xr+1}")
            e("v_pk_mul_f32 v[154:155], v[154:155], v[150:151]")
            e("v_pk_mul_f32 v[156:157], v[156:157], v[152:153]")
            e("v_cvt_pk_bf16_f32 v158, v154, v155")
            e("v_cvt_pk_bf16_f32 v159, v156, v157")
            e("v_lshlrev_b32 v154, 16, v158")
            e("v_and_b32 v155, 0xffff0000, v158")
            e("v_lshlrev_b32 v156, 16, v159")
            e("v_and_b32 v157, 0xffff0000, v159")
            a = acc(dt, u)
            e(f"v_pk_add_f32 {vr(a,2)}, {vr(a,2)}, v[154:155]")
            e(f"v_pk_add_f32 {vr(a+2,2)}, {vr(a+2,2)}, v[156:157]")
            e(f"buffer_store_dwordx4 {vr(a,4)}, v{25 if u==0 else 28}, s[16:19], 0 offen offset:{dt*64} sc1")
    e("s_waitcnt vmcnt(0)")
    e("s_barrier")
    e(f"s_cmp_eq_u32 s{S_W}, 0")
    e("s_cbranch_scc0 k2_done")
    e("v_mov_b32 v2, 1")
    e("v_mov_b32 v3, s58")
    e("v_cmp_eq_u32 vcc, 0, v1")
    e("s_and_saveexec_b64 s[60:61], vcc")
    e("buffer_store_dword v2, v3, s[24:27], 0 offen sc1")
    e("s_endpgm")
    e.label("k2_f")
    e("v_lshrrev_b32 v18, 1, v14")
    e("v_lshlrev_b32 v18, 4, v18")
    e("v_and_b32 v19, 1, v14")
    e("v_lshl_add_u32 v18, v19, 2, v18")
    e("v_add_u32 v18, v18, v16")
    e(f"s_lshl_b32 s{S_T0}, s{S_KP}, 5")
    e(f"v_add_u32 v18, s{S_T0}, v18")
    e("v_mul_u32_u24 v18, 160, v18")
    e("v_lshl_add_u32 v18, v17, 3, v18")
    e(f"v_add_u32 v{VW}, 16384, v18")
    srd(e, 8, 36, 37, XN_SZ)
    srd(e, 12, 30, 31, S_SZ)
    gen_mainloop(e, "f", NKF)
    e(f"v_add_u32 v27, {16*1280}, v24")
    for dt in range(5):
        for u in range(2):
            e(f"buffer_load_dwordx2 {vr(112+(dt*2+u)*2,2)}, v{24 if u==0 else 27}, s[8:11], 0 offen offset:{dt*32}")
    gen_reduce(e)
    e("v_mov_b32 v3, s58")
    e(f"s_mov_b32 s{S_CNT}, 0")
    e.label("k2_poll")
    e(f"s_add_u32 s{S_CNT}, s{S_CNT}, 1")
    e(f"s_cmp_gt_u32 s{S_CNT}, 200000")
    e("s_cbranch_scc1 k2_poll_out")
    e("buffer_load_dword v2, v3, s[24:27], 0 offen sc1")
    e("s_waitcnt vmcnt(0)")
    e(f"v_readfirstlane_b32 s{S_T0}, v2")
    e(f"s_cmp_eq_u32 s{S_T0}, 1")
    e("s_cbranch_scc0 k2_poll")
    e.label("k2_poll_out")
    e(f"v_add_u32 v28, {16*2560}, v25")
    for dt in range(5):
        for u in range(2):
            e(f"buffer_load_dwordx4 {vr(136+(dt*2+u)*4,4)}, v{25 if u==0 else 28}, s[16:19], 0 offen offset:{dt*64} sc1")
    NLOG2E = -1.4426950408889634
    for dt in range(5):
        for u in range(2):
            a = acc(dt, u)
            t = 176
            e(f"v_cvt_pk_bf16_f32 v{t}, v{a}, v{a+1}")
            e(f"v_cvt_pk_bf16_f32 v{t+1}, v{a+2}, v{a+3}")
            e(f"v_lshlrev_b32 v{a}, 16, v{t}")
            e(f"v_and_b32 v{a+1}, 0xffff0000, v{t}")
            e(f"v_lshlrev_b32 v{a+2}, 16, v{t+1}")
            e(f"v_and_b32 v{a+3}, 0xffff0000, v{t+1}")
            for i in range(4):
                e(f"v_mul_f32 v{t+2+i}, {f32(NLOG2E)}, v{a+i}")
            for i in range(4):
                e(f"v_exp_f32 v{t+2+i}, v{t+2+i}")
            e("s_nop 0")
            for i in range(4):
                e(f"v_add_f32 v{t+2+i}, 1.0, v{t+2+i}")
            for i in range(4):
                e(f"v_rcp_f32 v{t+2+i}, v{t+2+i}")
            e("s_nop 0")
            for i in range(4):
                e(f"v_mul_f32 v{a+i}, v{a+i}, v{t+2+i}")
            e(f"v_cvt_pk_bf16_f32 v{t}, v{a}, v{a+1}")
            e(f"v_cvt_pk_bf16_f32 v{t+1}, v{a+2}, v{a+3}")
            e(f"v_lshlrev_b32 v{a}, 16, v{t}")
            e(f"v_and_b32 v{a+1}, 0xffff0000, v{t}")
            e(f"v_lshlrev_b32 v{a+2}, 16, v{t+1}")
            e(f"v_and_b32 v{a+3}, 0xffff0000, v{t+1}")
    e("s_waitcnt vmcnt(0)")
    for dt in range(5):
        for u in range(2):
            a = acc(dt, u)
            xr = 112 + (dt * 2 + u) * 2
            sr = 136 + (dt * 2 + u) * 4
            t = 176 + (u * 4)
            e(f"v_lshlrev_b32 v{t}, 16, v{xr}")
            e(f"v_and_b32 v{t+1}, 0xffff0000, v{xr}")
            e(f"v_lshlrev_b32 v{t+2}, 16, v{xr+1}")
            e(f"v_and_b32 v{t+3}, 0xffff0000, v{xr+1}")
            e(f"v_pk_mul_f32 {vr(a,2)}, {vr(a,2)}, {vr(sr,2)}")
            e(f"v_pk_mul_f32 {vr(a+2,2)}, {vr(a+2,2)}, {vr(sr+2,2)}")
            e(f"v_pk_add_f32 {vr(a,2)}, {vr(a,2)}, {vr(t,2)}")
            e(f"v_pk_add_f32 {vr(a+2,2)}, {vr(a+2,2)}, {vr(t+2,2)}")
            e(f"buffer_store_dwordx4 {vr(a,4)}, v{25 if u==0 else 28}, s[12:15], 0 offen offset:{dt*64}")
    e("s_endpgm")
    gen_loader(e)
    e.label("k2_done")
    e("s_endpgm")
```

```python
import sys

NAME = "recurrent_scan__ssm_conv_s5__dense_activation_relu__prompt"

L, D, P, F = 2048, 640, 640, 1728
KA = dict(x=0, lre=8, lim=16, bre=24, bim=32, cre=40, cim=48, logdt=56, dskip=64, bx=72, w1=80, w2=88, out=96, dbg=104, ws=112)
WS_XN = 0
XN_SZ = L * D * 2
WS_HT = WS_XN + XN_SZ
HT_SZ = 2 * P * L * 2
WS_H1T = WS_HT + HT_SZ
H1T_SZ = F * L * 2
WS_S = WS_H1T + H1T_SZ
S_SZ = L * D * 4
WS_PAR = WS_S + S_SZ
PAR_SZ = P * 32
WS_AGG = WS_PAR + PAR_SZ
AGG_SZ = 16 * P * 8
WS_FLG = WS_AGG + AGG_SZ
FLG_SZ = 128 * 128

class E:
    def __init__(self):
        self.lines = []
        self.uid = 0
    def __call__(self, s):
        self.lines.append("    " + s)
    def label(self, s):
        self.lines.append(s + ":")
    def raw(self, s):
        self.lines.append(s)
    def newlabel(self, p="L"):
        self.uid += 1
        return f"{p}_{self.uid}"
    def text(self):
        return "\n".join(self.lines) + "\n"

def srd(e, d, base_lo, base_hi, size, off=0):
    if off:
        e(f"s_add_u32 s{d}, s{base_lo}, {off}")
        e(f"s_addc_u32 s{d+1}, s{base_hi}, 0")
    else:
        e(f"s_mov_b32 s{d}, s{base_lo}")
        e(f"s_mov_b32 s{d+1}, s{base_hi}")
    e(f"s_mov_b32 s{d+2}, {size}")
    e(f"s_mov_b32 s{d+3}, 0x00020000")

def kdesc(e, name, vgpr, sgpr):
    acc = (vgpr + 3) // 4 * 4
    e.raw(f".amdhsa_kernel {name}")
    e.raw(f"  .amdhsa_next_free_vgpr {vgpr}")
    e.raw(f"  .amdhsa_next_free_sgpr {sgpr}")
    e.raw(f"  .amdhsa_accum_offset {acc}")
    e.raw("  .amdhsa_group_segment_fixed_size 0")
    e.raw("  .amdhsa_kernarg_size 120")
    e.raw("  .amdhsa_user_sgpr_count 2")
    e.raw("  .amdhsa_user_sgpr_kernarg_segment_ptr 1")
    e.raw("  .amdhsa_system_sgpr_workgroup_id_x 1")
    e.raw("  .amdhsa_float_denorm_mode_32 3")
    e.raw(".end_amdhsa_kernel")

def khead(e, name):
    e.raw(f".globl {name}")
    e.raw(".p2align 8")
    e.raw(f".type {name},@function")
    e.label(name)

def f32(x):
    import struct
    return "0x%08x" % struct.unpack("<I", struct.pack("<f", x))[0]

K0_LN_WGS = 256
K0_GRID = K0_LN_WGS + 3

def reduce32(e, v, t):
    for r in (8, 4, 2, 1):
        e("s_nop 1")
        e(f"v_add_f32_dpp v{v}, v{v}, v{v} row_ror:{r} row_mask:0xf bank_mask:0xf")
    e(f"v_mov_b32 v{t}, v{v}")
    e("s_nop 1")
    e(f"v_permlane16_swap_b32 v{v}, v{t}")
    e("s_nop 1")
    e(f"v_add_f32 v{v}, v{v}, v{t}")

def bf16r(e, v):
    e(f"v_cvt_pk_bf16_f32 v{v}, v{v}, v{v}")
    e(f"v_lshlrev_b32 v{v}, 16, v{v}")

def gen_k0(e):
    khead(e, "k0_kernel")
    e(f"s_cmp_ge_u32 s2, {K0_GRID}")
    e("s_cbranch_scc1 k0_done")
    e(f"s_load_dwordx2 s[4:5], s[0:1], {KA['x']}")
    e(f"s_load_dwordx2 s[6:7], s[0:1], {KA['ws']}")
    e(f"s_cmp_ge_u32 s2, {K0_LN_WGS}")
    e("s_cbranch_scc1 k0_params")
    e("v_lshrrev_b32 v1, 5, v0")
    e("v_and_b32 v2, 31, v0")
    e("s_lshl_b32 s3, s2, 3")
    e("v_add_u32 v1, s3, v1")
    e("v_mul_u32_u24 v1, 1280, v1")
    e("v_lshl_add_u32 v1, v2, 3, v1")
    e("s_waitcnt lgkmcnt(0)")
    srd(e, 8, 4, 5, XN_SZ)
    srd(e, 12, 6, 7, XN_SZ, WS_XN)
    srd(e, 16, 6, 7, AGG_SZ + FLG_SZ, WS_AGG)
    for m in range(5):
        e(f"buffer_load_dwordx2 v[{4+2*m}:{5+2*m}], v1, s[8:11], 0 offen offset:{256*m}")
    e("s_mul_i32 s20, s2, 320")
    e("s_and_b32 s21, s2, 127")
    e("s_lshl_b32 s21, s21, 7")
    e(f"s_add_u32 s21, s21, {AGG_SZ}")
    e("v_lshlrev_b32 v44, 4, v0")
    e("v_add_u32 v44, s20, v44")
    e("v_mov_b32 v45, s21")
    e("v_cmp_gt_u32 vcc, 20, v0")
    e("s_nop 1")
    e("v_cndmask_b32 v44, v45, v44, vcc")
    e("v_cndmask_b32 v48, 0, -1, vcc")
    e("v_mov_b32 v49, v48")
    e("v_mov_b32 v50, v48")
    e("v_mov_b32 v51, v48")
    e("v_cmp_gt_u32 vcc, 21, v0")
    e("s_and_saveexec_b64 s[22:23], vcc")
    e("s_cbranch_execz k0_noinit")
    e("buffer_store_dwordx4 v[48:51], v44, s[16:19], 0 offen")
    e.label("k0_noinit")
    e("s_mov_b64 exec, s[22:23]")
    e("s_waitcnt vmcnt(0)")
    for m in range(10):
        e(f"v_lshlrev_b32 v{20+2*m}, 16, v{4+m}")
        e(f"v_and_b32 v{21+2*m}, 0xffff0000, v{4+m}")
    e("v_add_f32 v40, v20, v21")
    e("v_add_f32 v41, v22, v23")
    for m in range(2, 10):
        e(f"v_add_f32 v{40+(m&1)}, v{40+(m&1)}, v{20+2*m}")
        e(f"v_add_f32 v{40+(m&1)}, v{40+(m&1)}, v{21+2*m}")
    e("v_add_f32 v40, v40, v41")
    reduce32(e, 40, 41)
    e(f"v_mul_f32 v40, {f32(1.0/640)}, v40")
    e("v_mov_b32 v42, 0")
    e("v_mov_b32 v43, 0")
    for m in range(20):
        e(f"v_sub_f32 v{4+(m&3)}, v{20+m}, v40")
        e(f"v_fmac_f32 v{42+(m&1)}, v{4+(m&3)}, v{4+(m&3)}")
    e("v_add_f32 v42, v42, v43")
    reduce32(e, 42, 43)
    e(f"v_mul_f32 v42, {f32(1.0/640)}, v42")
    bf16r(e, 40)
    bf16r(e, 42)
    e(f"v_add_f32 v42, {f32(1e-5)}, v42")
    bf16r(e, 42)
    e("v_sqrt_f32 v42, v42")
    e("s_nop 0")
    bf16r(e, 42)
    e("v_rcp_f32 v42, v42")
    e("s_nop 0")
    for m in range(10):
        a, b = 20 + 2 * m, 21 + 2 * m
        e(f"v_sub_f32 v{a}, v{a}, v40")
        e(f"v_sub_f32 v{b}, v{b}, v40")
        e(f"v_cvt_pk_bf16_f32 v{4+m}, v{a}, v{b}")
        e(f"v_lshlrev_b32 v{a}, 16, v{4+m}")
        e(f"v_and_b32 v{b}, 0xffff0000, v{4+m}")
        e(f"v_mul_f32 v{a}, v{a}, v42")
        e(f"v_mul_f32 v{b}, v{b}, v42")
        e(f"v_cvt_pk_bf16_f32 v{4+m}, v{a}, v{b}")
    for m in range(5):
        e(f"buffer_store_dwordx2 v[{4+2*m}:{5+2*m}], v1, s[12:15], 0 offen offset:{256*m}")
    e("s_endpgm")
    e.label("k0_params")
    e(f"s_load_dwordx2 s[24:25], s[0:1], {KA['lre']}")
    e(f"s_load_dwordx2 s[26:27], s[0:1], {KA['lim']}")
    e(f"s_load_dwordx2 s[28:29], s[0:1], {KA['logdt']}")
    e(f"s_sub_u32 s3, s2, {K0_LN_WGS}")
    e("s_lshl_b32 s3, s3, 8")
    e("v_add_u32 v1, s3, v0")
    e("v_lshlrev_b32 v2, 1, v1")
    e("s_waitcnt lgkmcnt(0)")
    srd(e, 8, 24, 25, P * 2)
    srd(e, 12, 26, 27, P * 2)
    srd(e, 16, 28, 29, P * 2)
    srd(e, 20, 6, 7, PAR_SZ, WS_PAR)
    e("buffer_load_ushort v4, v2, s[8:11], 0 offen")
    e("buffer_load_ushort v5, v2, s[12:15], 0 offen")
    e("buffer_load_ushort v6, v2, s[16:19], 0 offen")
    e("s_waitcnt vmcnt(0)")
    e("v_lshlrev_b32 v4, 16, v4")
    e("v_lshlrev_b32 v5, 16, v5")
    e("v_lshlrev_b32 v6, 16, v6")
    LOG2E = 1.4426950408889634
    e(f"v_mul_f32 v6, {f32(LOG2E)}, v6")
    e("v_exp_f32 v6, v6")
    e("s_nop 0")
    bf16r(e, 6)
    e("v_mul_f32 v7, v6, v4")
    e("v_mul_f32 v8, v6, v5")
    e(f"v_mul_f32 v7, {f32(LOG2E)}, v7")
    e("v_exp_f32 v7, v7")
    e("v_mul_f32 v8, 0.15915494309189535, v8")
    e("v_fract_f32 v8, v8")
    e("v_sin_f32 v9, v8")
    e("v_cos_f32 v10, v8")
    e("s_nop 0")
    e("v_mul_f32 v12, v7, v10")
    e("v_mul_f32 v13, v7, v9")
    e("v_subrev_f32 v20, 1.0, v12")
    e("v_mul_f32 v21, v4, v4")
    e("v_fmac_f32 v21, v5, v5")
    e("v_rcp_f32 v21, v21")
    e("s_nop 0")
    e("v_add_f32 v21, v21, v21")
    e("v_mul_f32 v18, v20, v4")
    e("v_fmac_f32 v18, v13, v5")
    e("v_mul_f32 v19, v13, v4")
    e("v_fma_f32 v19, -v20, v5, v19")
    e("v_mul_f32 v18, v18, v21")
    e("v_mul_f32 v19, v19, v21")
    e("v_sub_f32 v13, 0, v13")
    e("v_mov_b32 v22, v12")
    e("v_mov_b32 v23, v13")
    for it in range(7):
        e("v_mul_f32 v24, v22, v22")
        e("v_fma_f32 v24, -v23, v23, v24")
        e("v_mul_f32 v25, v22, v23")
        e("v_add_f32 v23, v25, v25")
        e("v_mov_b32 v22, v24")
        if it == 2:
            e("v_mov_b32 v14, v22")
            e("v_mov_b32 v15, v23")
    e("v_mov_b32 v16, v22")
    e("v_mov_b32 v17, v23")
    e("v_lshlrev_b32 v2, 5, v1")
    e("buffer_store_dwordx4 v[12:15], v2, s[20:23], 0 offen")
    e("buffer_store_dwordx4 v[16:19], v2, s[20:23], 0 offen offset:16")
    e.label("k0_done")
    e("s_endpgm")

def build(kernels):
    e = E()
    hdr = open("cdna_kernels/%s.s.ref" % NAME).read().split("; Override launch")[0]
    e.raw(hdr.rstrip())
    for (name, grid, block, lds) in kernels:
        e.raw(f"; @launch kernel={name} grid=({grid},1,1) block=({block},1,1) lds={lds}")
    e.raw('.amdgcn_target "amdgcn-amd-amdhsa--gfx950"')
    e.raw(".text")
    return e

if __name__ == "__main__":
    import importlib
    import gen_k1, gen_k2
    kernels = [("k0_kernel", K0_GRID, 256, 0)]
    kernels.append(("k1_kernel", 256, 512, gen_k1.K1_LDS))
    kernels.append(("k2_kernel", 256, 512, gen_k2.K2_LDS))
    e = build(kernels)
    gen_k0(e)
    gen_k1.gen_k1(e)
    gen_k2.gen_k2(e)
    e.raw('.section .rodata,"a"')
    e.raw(".p2align 6")
    kdesc(e, "k0_kernel", 56, 40)
    e.raw(".p2align 6")
    kdesc(e, "k1_kernel", gen_k1.K1_VGPR, 100)
    e.raw(".p2align 6")
    kdesc(e, "k2_kernel", gen_k2.K2_VGPR, 100)
    out = sys.argv[1] if len(sys.argv) > 1 else "cdna_kernels/%s.s" % NAME
    open(out, "w").write(e.text())
```
